```python
import torch

def _softmax(x, axis=-1):
    return torch.softmax(x, dim=axis)
def _gelu(x):
    return torch.nn.functional.gelu(x, approximate="tanh")
def _silu(x):
    return torch.nn.functional.silu(x)
def _sigmoid(x):
    return torch.sigmoid(x)
def _layernorm(x, axis=-1, eps=1e-5):
    m = x.mean(dim=axis, keepdim=True)
    v = x.var(dim=axis, keepdim=True, unbiased=False)
    return (x - m) / torch.sqrt(v + eps)
def _scatter_add(tgt, idx, src, axis=0):
    return tgt.clone().index_add_(axis, idx, src)
def _segment_sum(src, seg, n):
    out = torch.zeros((n,) + src.shape[1:], dtype=src.dtype)
    return out.index_add_(0, seg, src)
def _pad(x, pw):
    flat = tuple(v for pair in reversed(pw) for v in pair)
    return torch.nn.functional.pad(x, flat)

kernel_name = 'standalone__batchnorm__sampling'

def setup_inputs():

    _w = (lambda a: (lambda t: t.to(torch.bfloat16) if t.is_floating_point() else t)(torch.as_tensor(a)))
    B, S, C = 1024, 32, 576
    K = 3
    return {
        "x": _w((lambda *s: torch.randn(*s, dtype=torch.bfloat16) * 0.05)(B, S, C)),
        "w": _w((lambda *s: torch.randn(*s, dtype=torch.bfloat16) * 0.05)(K, C, C) * (1.0 / (K * C) ** 0.5)),
        "mean": _w((lambda *s: torch.randn(*s, dtype=torch.bfloat16) * 0.05)(C) * 0.1),
        "var": _w(torch.abs((lambda *s: torch.randn(*s, dtype=torch.bfloat16) * 0.05)(C)) + 0.5),
        "g": _w((lambda *s: torch.randn(*s, dtype=torch.bfloat16) * 0.05)(C) + 1.0),
        "b": _w((lambda *s: torch.randn(*s, dtype=torch.bfloat16) * 0.05)(C) * 0.1),
    }

def reference(x, w, mean, var, g, b):
    K = 3
    P = K // 2
    S = x.shape[1]
    xp = _pad(x, ((0, 0), (P, P), (0, 0)))
    y = sum(torch.einsum('bsc,cd->bsd', xp[:, k:k + S, :], w[k]) for k in range(K))
    inv_std = 1.0 / torch.sqrt(var + 1e-5)
    y = (y - mean) * (g * inv_std) + b
    return _silu(y)
```

```python
import sys
HDR = """; @launch grid=(256,1,1) block=(256,1,1) lds=65536
.amdgcn_target "amdgcn-amd-amdhsa--gfx950"
.text
.globl k_kernel
.p2align 8
.type k_kernel,@function
k_kernel:"""
FTR = """.section .rodata,"a"
.p2align 6
.amdhsa_kernel k_kernel
  .amdhsa_next_free_vgpr 512
  .amdhsa_next_free_sgpr 102
  .amdhsa_accum_offset 256
  .amdhsa_group_segment_fixed_size 0
  .amdhsa_kernarg_size 72
  .amdhsa_user_sgpr_count 2
  .amdhsa_user_sgpr_kernarg_segment_ptr 1
  .amdhsa_system_sgpr_workgroup_id_x 1
.end_amdhsa_kernel"""
NIT = 16
def gen(name, bodyfn, inner=2, src=0):
    L = [HDR]; A = L.append
    A(f"s_load_dwordx2 s[4:5], s[0:1], {src*8}\ns_load_dwordx2 s[6:7], s[0:1], 64\ns_load_dwordx2 s[8:9], s[0:1], 8")
    A("s_waitcnt lgkmcnt(0)")
    A("s_mov_b32 s10, 0x200000\ns_mov_b32 s11, 0x20000")
    A("v_lshlrev_b32 v1, 4, v0")
    for i in range(48):
        A(f"global_load_dwordx4 v[{64+4*i}:{64+4*i+3}], v1, s[4:5]")
        A("v_add_u32 v1, 4096, v1")
    for i in range(32):
        A(f"global_load_dwordx4 a[{128+4*i}:{128+4*i+3}], v1, s[4:5]")
        A("v_add_u32 v1, 4096, v1")
        if i == 10: A("s_waitcnt vmcnt(0)")
    for i in range(128): A(f"v_accvgpr_write_b32 a{i}, 0")
    A("s_waitcnt vmcnt(0)")
    A("v_lshlrev_b32 v2, 4, v0")
    for i in range(16):
        A(f"ds_write_b128 v2, v[{64+4*i}:{64+4*i+3}] offset:{4096*i}")
    for i in range(10, 40): A(f"v_mov_b32 v{i}, v{64+i}")
    A("v_and_b32 v2, 63, v0\nv_lshlrev_b32 v2, 4, v2")
    A("v_lshlrev_b32 v3, 4, v0")
    A("s_mov_b32 s14, 0")
    A("s_waitcnt lgkmcnt(0)\ns_barrier")
    for it in range(NIT + 1):
        A(f"s_memtime s[{20+4*it}:{21+4*it}]\ns_memrealtime s[{22+4*it}:{23+4*it}]")
        if it == NIT: break
        A("s_getpc_b64 s[16:17]")
        A(f"s_add_u32 s16, s16, BODY-.\ns_addc_u32 s17, s17, 0")
        A("s_swappc_b64 s[18:19], s[16:17]")
    A("s_waitcnt lgkmcnt(0) vmcnt(0)")
    A("v_lshrrev_b32 v2, 6, v0\ns_lshl_b32 s3, s2, 2\nv_add_u32 v2, s3, v2\nv_lshlrev_b32 v2, 9, v2")
    n = 4 * (NIT + 1)
    for i in range(n): A(f"v_mov_b32 v{40+i}, s{20+i}")
    A("v_and_b32 v3, 63, v0\nv_cmp_eq_u32 vcc, 0, v3\ns_and_saveexec_b64 s[12:13], vcc")
    for i in range(n // 4): A(f"global_store_dwordx4 v2, v[{40+4*i}:{43+4*i}], s[6:7] offset:{16*i}")
    A("s_waitcnt vmcnt(0)\ns_endpgm")
    A(".p2align 6\nBODY:")
    A(f"s_mov_b32 s12, {inner}")
    A("L0:")
    bodyfn(A)
    A("s_sub_u32 s12, s12, 1\ns_cmp_lg_u32 s12, 0\ns_cbranch_scc1 L0")
    A("s_setpc_b64 s[18:19]")
    A(FTR)
    open(name + ".s", "w").write("\n".join(L) + "\n")

def m16(A, c, a, b, ty="bf16", cf="a", af="v", bf="v"):
    A(f"v_mfma_f32_16x16x32_{ty} {cf}[{c}:{c+3}], {af}[{a}:{a+3}], {bf}[{b}:{b+3}], {cf}[{c}:{c+3}]")
def m32(A, c, a, b, ty="bf16"):
    A(f"v_mfma_f32_32x32x16_{ty} a[{c}:{c+15}], v[{a}:{a+3}], v[{b}:{b+3}], a[{c}:{c+15}]")

NB = 120
def pat(kind, ty="bf16", extra=None, af="v", bf="v"):
    def f(A):
        for i in range(NB):
            if kind == "bfix":   a, b, c = i % 8, (i // 8) % 8, i % 32
            elif kind == "afix": a, b, c = (i // 8) % 8, i % 8, i % 32
            elif kind == "both": a, b, c = i % 8, (i * 3 + i // 8) % 8, i % 32
            elif kind == "chain3": a, b, c = i % 3 + 3 * ((i // 24) % 2), (i // 3 + i % 3) % 8, (i // 3) % 32
            elif kind == "chain8": a, b, c = i % 8, (i * 3 + i // 8) % 8, (i // 8) % 32
            elif kind == "same": a, b, c = 0, 0, i % 32
            elif kind == "afix4": a, b, c = (i // 4) % 8, i % 4, i % 32
            elif kind == "snake":
                r = i // 8; a = r % 8; b = (i % 8) if r % 2 == 0 else 7 - (i % 8); c = i % 32
            ao = (128 if af == "a" else 64) + 4 * a
            bo = (160 if bf == "a" else 96) + 4 * b
            m16(A, 4 * c, ao, bo, ty, af=af, bf=bf)
            if extra: extra(A, i)
    return f
names = []
def G(n, f, **kw):
    gen(n, f, **kw); names.append(n)
for k in ["bfix", "afix", "both", "chain3", "chain8", "same", "afix4", "snake"]:
    G("pw_" + k, pat(k))
G("pw_afix_zero", pat("afix"), src=2)
G("pw_afix_f16", pat("afix", "f16"), src=3)
G("pw_afix_aa", pat("afix", af="a", bf="a"))
def ds(n):
    def e(A, i):
        if i % n == 0: A(f"ds_read_b128 v[{128+4*((i//n)%16)}:{131+4*((i//n)%16)}], v2 offset:{1024*((i//n)%60)}")
    return e
G("pw_afix_ds8", pat("afix", extra=ds(8)))
G("pw_afix_ds4", pat("afix", extra=ds(4)))
G("pw_afix_ds2", pat("afix", extra=ds(2)))
def gl(n):
    def e(A, i):
        if i % n == 0:
            j = i // n
            A(f"buffer_load_dwordx4 v[{128+4*(j%30)}:{131+4*(j%30)}], v3, s[8:11], s14 offen")
            A("s_add_u32 s14, s14, 4096\ns_and_b32 s14, s14, 0x1fffff")
            A("s_waitcnt vmcnt(28)")
    return e
G("pw_afix_gl8", pat("afix", extra=gl(8)))
G("pw_afix_gl6", pat("afix", extra=gl(6)))
G("pw_afix_gl4", pat("afix", extra=gl(4)))
def va(n):
    def e(A, i):
        for f in range(n): A(f"v_add_f32 v{40+(i*n+f)%20}, v{10+(i*n+f)%30}, v{10+(i*n+f+7)%30}")
    return e
G("pw_afix_va1", pat("afix", extra=va(1)))
G("pw_afix_va2", pat("afix", extra=va(2)))
def nop(n):
    def e(A, i):
        if i % n == 0: A("s_nop 7")
    return e
G("pw_afix_nop4", pat("afix", extra=nop(4)))
G("pw_afix_nop2", pat("afix", extra=nop(2)))
G("pw_afix_nop1", pat("afix", extra=nop(1)))
print(" ".join(names))
```

```python
from gen_pw import *
names.clear()
cnt = [0]
def op(kind):
    cnt[0] += 1
    n = cnt[0]
    d = 40 + (n % 10) * 2; a = 10 + (n * 2) % 28; b = 10 + (n * 2 + 6) % 28
    return {
        "v": f"v_add_f32 v{d}, v{a}, v{b}",
        "f": f"v_fma_f32 v{d}, v{a}, s14, s14",
        "t": f"v_exp_f32 v{d}, v{a}",
        "r": f"v_rcp_f32 v{d}, v{a}",
        "p": f"v_pk_add_f32 v[{d}:{d+1}], v[{a}:{a+1}], v[{b}:{b+1}]",
        "m": f"v_pk_mul_f32 v[{d}:{d+1}], v[{a}:{a+1}], v[{b}:{b+1}]",
        "c": f"v_cvt_pk_bf16_f32 v{d}, v{a}, v{b}",
        "d": f"ds_read_b128 v[{128+4*(n%16)}:{131+4*(n%16)}], v2 offset:{1024*(n%60)}",
        "w": f"ds_write_b128 v3, v[{192+4*(n%8)}:{195+4*(n%8)}] offset:{4096*(n%15)}",
        "g": f"buffer_load_dwordx4 v[{128+4*(n%30)}:{131+4*(n%30)}], v3, s[8:11], s14 offen offset:{(n%4)*1024}",
        "W": "s_waitcnt vmcnt(20)",
        "L": "s_waitcnt lgkmcnt(8)",
        "s": "s_add_u32 s15, s15, 1",
        "n": "s_nop 0",
    }[kind]
def seq(pattern):
    gaps = pattern.split("_")
    def e(A, i):
        for k in gaps[i % len(gaps)]:
            if k != "0": A(op(k))
    return e
for p in ["0", "v", "vv", "vvv", "f", "ff", "t", "tv", "t_vv", "tv_v", "r_c", "cc", "p", "pp", "p_0", "m_0", "pv", "vd", "vvd", "vv_vvd_vv_vv", "vs", "vvs", "vvW", "vW", "vvn",
          "g_0_0_0", "gv_0_0_0", "gv_vv_vv_vv", "gvv_vv_vv_vv", "g_vv_vv_vv", "vg_vv_vv_vv", "w_0_0_0", "wv_vv_vv_vv", "wvv_vv_vv_vv", "vvv_v", "vvvv_0", "tt_0", "tvv_0"]:
    G("p3_" + p, pat("chain3", extra=seq(p)))
open("names3.txt", "w").write(" ".join(names))
```

```python
from gen_pw3 import *
names.clear()
def pat32(chain, extra=None, cf="a"):
    def f(A):
        for i in range(60):
            a = i % 6; b = (i * 3 + i // 8) % 8; c = (i // chain) % 2
            if chain == 1: a = (i // 2) % 8; c = i % 2
            co = 16 * c + (0 if cf == "a" else 224)
            A(f"v_mfma_f32_32x32x16_bf16 {cf}[{co}:{co+15}], v[{64+4*a}:{67+4*a}], a[{160+4*b}:{163+4*b}], {cf}[{co}:{co+15}]")
            if extra: extra(A, i)
    return f
def pat16(chain, extra=None, cf="a"):
    def f(A):
        for i in range(120):
            a = i % 6; b = (i * 3 + i // 8) % 8; c = (i // chain) % 4
            if chain == 1: a = (i // 4) % 8
            co = 4 * c + (0 if cf == "a" else 224)
            A(f"v_mfma_f32_16x16x32_bf16 {cf}[{co}:{co+3}], v[{64+4*a}:{67+4*a}], a[{160+4*b}:{163+4*b}], {cf}[{co}:{co+3}]")
            if extra: extra(A, i)
    return f
for ch in (1, 2, 3, 6, 30):
    G(f"p4_32_ch{ch}", pat32(ch, cf="v"))
    G(f"p4_16_ch{ch}", pat16(ch, cf="v"))
G("p4_32_ch6a", pat32(6, cf="a"))
G("p4_16_ch6a", pat16(6, cf="a"))
import gen_pw3
old = gen_pw3.op
def op2(kind):
    n = cnt[0] + 1
    if kind == "x":
        cnt[0] += 1
        return f"ds_write_b64 v3, v[{192+2*(n%8)}:{193+2*(n%8)}] offset:{4096*(n%15)}"
    if kind == "y":
        cnt[0] += 1
        return f"ds_write_b32 v3, v{192+(n%8)} offset:{4096*(n%15)}"
    return old(kind)
gen_pw3.op = op2
for p in ["d_0", "dv_0", "dv_vv", "dd_0_0_0", "dvv_0", "sd_0", "Wd_0", "Wg_0_0_0", "gW_0_0_0", "gs_0_0_0", "x_0", "x_0_0_0", "y_0", "yv_0", "dL_0", "Lv", "Lt"]:
    G("p4_16_" + p, pat("chain3", extra=seq(p)))
for p in ["vvvvv", "vvvvvv", "gvvvv_vvvvvv", "vgvvv_vvvvvv", "gvvv_vvvvv", "wv_vvvvv", "wvv_vvvvv", "dvvvv", "vvdvv", "ttvv", "tvtv", "ttt", "pvv", "gdvvv_vvvvv", "gWvvv_tvtv"]:
    G("p4_32_" + p, pat32(6, extra=seq(p), cf="v"))
open("names4.txt", "w").write(" ".join(names))
```
